```python
import torch

def _softmax(x, axis=-1):
    return torch.softmax(x, dim=axis)
def _gelu(x):
    return torch.nn.functional.gelu(x, approximate="tanh")
def _silu(x):
    return torch.nn.functional.silu(x)
def _sigmoid(x):
    return torch.sigmoid(x)
def _layernorm(x, axis=-1, eps=1e-5):
    m = x.mean(dim=axis, keepdim=True)
    v = x.var(dim=axis, keepdim=True, unbiased=False)
    return (x - m) / torch.sqrt(v + eps)
def _scatter_add(tgt, idx, src, axis=0):
    return tgt.clone().index_add_(axis, idx, src)
def _segment_sum(src, seg, n):
    out = torch.zeros((n,) + src.shape[1:], dtype=src.dtype)
    return out.index_add_(0, seg, src)
def _pad(x, pw):
    flat = tuple(v for pair in reversed(pw) for v in pair)
    return torch.nn.functional.pad(x, flat)

kernel_name = 'gated_mix__linear_attn_block__sliding_block__prompt'

def setup_inputs():

    _w = (lambda a: (lambda t: t.to(torch.bfloat16) if t.is_floating_point() else t)(torch.as_tensor(a)))
    def _A_setup():
        B, S, D = 1, 2048, 1024
        return {
            "x": _w((lambda *s: torch.randn(*s, dtype=torch.bfloat16) * 0.05)(B, S, D)),
            "wqkv": _w((lambda *s: torch.randn(*s, dtype=torch.bfloat16) * 1.6)(D, 3 * D)),
            "wo": _w((lambda *s: torch.randn(*s, dtype=torch.bfloat16) * 0.4)(D, D)),
        }
    _A_in = _A_setup()

    def _B_setup():
        B, S, D = 1, 2048, 1024
        return {
            "x": _w((lambda *s: torch.randn(*s, dtype=torch.bfloat16) * 0.05)(B, S, D)),
            "wqkv": _w((lambda *s: torch.randn(*s, dtype=torch.bfloat16) * 0.8)(D, 3 * D)),
            "wo": _w((lambda *s: torch.randn(*s, dtype=torch.bfloat16) * 0.05)(D, D)),
        }
    _B_in = _B_setup()

    return {
        "A_x": _A_in["x"],
        "A_wqkv": _A_in["wqkv"],
        "A_wo": _A_in["wo"],
        "B_x": _B_in["x"],
        "B_wqkv": _B_in["wqkv"],
        "B_wo": _B_in["wo"],
        "gate_w": _w((lambda *s: torch.randn(*s, dtype=torch.bfloat16) * 0.05)(1024) * 16.0),
    }

def reference(A_x, A_wqkv, A_wo, B_x, B_wqkv, B_wo, gate_w):
    def _A_ref(x, wqkv, wo):
        B, S, D = x.shape
        H = 32; Dh = D // H
        qkv = (lambda x, *d: x.permute(*d))((x @ wqkv).reshape(B, S, 3, H, Dh), 2, 0, 3, 1, 4)
        q, k, v = qkv[0], qkv[1], qkv[2]
        phi = lambda t: torch.where(t > 0, t + 1, torch.exp(t)) + 1e-6
        pq, pk = phi(q), phi(k)
        kv = torch.einsum("bhsd,bhse->bhde", pk, v)
        z = torch.einsum("bhsd->bhd", pk)
        num = torch.einsum("bhqd,bhde->bhqe", pq, kv)
        den = torch.einsum("bhqd,bhd->bhq", pq, z)[..., None] + 1e-6
        o = num / den
        return (lambda x, *d: x.permute(*d))(o, 0, 2, 1, 3).reshape(B, S, D) @ wo

    def _B_ref(x, wqkv, wo):
        B, S, D = x.shape
        H = 32; Dh = D // H; W = 256
        qkv = (lambda x, *d: x.permute(*d))((x @ wqkv).reshape(B, S, 3, H, Dh), 2, 0, 3, 1, 4)
        q, k, v = qkv[0], qkv[1], qkv[2]
        scores = torch.einsum("bhqd,bhkd->bhqk", q, k) * (Dh ** -0.5)
        idx = torch.arange(S)
        mask = (idx[:, None] - idx[None, :] >= 0) & (idx[:, None] - idx[None, :] < W)
        scores = torch.where(mask[None, None], scores, -1e9)
        p = _softmax(scores, axis=-1)
        o = torch.einsum("bhqk,bhkd->bhqd", p, v)
        return (lambda x, *d: x.permute(*d))(o, 0, 2, 1, 3).reshape(B, S, D) @ wo

    x = A_x
    g = _sigmoid((x * gate_w).sum(-1, keepdims=True))
    a = _A_ref(x, A_wqkv, A_wo)
    b = _B_ref(x, B_wqkv, B_wo)
    return g * a + (1 - g) * b
```

```python
class Asm:
    def __init__(self):
        self.L = []
    def __call__(self, s):
        self.L.append(s)
    def ext(self, lst):
        self.L.extend(lst)
    def text(self):
        return "\n".join(self.L)

def vr(b, n=1, p="v"):
    return f"{p}{b}" if n == 1 else f"{p}[{b}:{b+n-1}]"
def ar(b, n=1): return vr(b, n, "a")
def sr(b, n=1): return vr(b, n, "s")

def srd(A, d, base, size):
    A(f"s_mov_b32 s{d}, s{base}")
    A(f"s_mov_b32 s{d+1}, s{base+1}")
    A(f"s_mov_b32 s{d+2}, {hex(size)}")
    A(f"s_mov_b32 s{d+3}, 0x20000")

def interleave(mfmas, fillers):
    out = []
    out += fillers.get(-1, [])
    for i, m in enumerate(mfmas):
        out.append(m)
        out += fillers.get(i, [])
    return out

def kernel_desc(name, vgpr, sgpr, accum):
    return f""".section .rodata,"a"
.p2align 6
.amdhsa_kernel {name}
  .amdhsa_next_free_vgpr {vgpr}
  .amdhsa_next_free_sgpr {sgpr}
  .amdhsa_accum_offset {accum}
  .amdhsa_group_segment_fixed_size 0
  .amdhsa_kernarg_size 80
  .amdhsa_user_sgpr_count 2
  .amdhsa_user_sgpr_kernarg_segment_ptr 1
  .amdhsa_system_sgpr_workgroup_id_x 1
.end_amdhsa_kernel
"""
```

```python
import re
TRANS = ("v_exp_", "v_log_", "v_rcp_", "v_rsq_", "v_sqrt_", "v_sin_", "v_cos_")
def regs_of(tok):
    tok = tok.strip()
    tok = re.sub(r"^-|^abs\(|\)$|^\||\|$", "", tok)
    tok = tok.lstrip("-")
    m = re.fullmatch(r"([vas])(\d+)", tok)
    if m: return {(m.group(1), int(m.group(2)))}
    m = re.fullmatch(r"([vas])\[(\d+):(\d+)\]", tok)
    if m: return {(m.group(1), i) for i in range(int(m.group(2)), int(m.group(3)) + 1)}
    if tok == "vcc": return {("s", "vcc")}
    if tok == "m0": return {("s", "m0")}
    if tok == "exec": return {("s", "exec")}
    return set()

class I:
    def __init__(self, text):
        self.text = text
        t = text.split(";")[0].strip()
        self.is_instr = bool(t) and not t.endswith(":") and not t.startswith(".")
        self.op = ""; self.defs = set(); self.uses = set(); self.kind = "other"
        self.srcC = set(); self.srcAB = set(); self.passes = 0; self.states = 1; self.dpp = False
        if not self.is_instr:
            self.states = 0; return
        parts = t.split(None, 1)
        self.op = op = parts[0]
        rest = parts[1] if len(parts) > 1 else ""
        ops = [o.strip() for o in rest.split(",")] if rest else []
        if ops:
            last = ops[-1].split()
            mods = last[1:]; ops[-1] = last[0]
        else: mods = []
        self.mods = mods
        R = [regs_of(o) for o in ops]
        U = lambda l: set().union(*l) if l else set()
        if op == "s_nop":
            self.states = int(ops[0], 0) + 1; self.kind = "salu"
        elif op.startswith("v_mfma"):
            self.kind = "mfma"; self.defs = R[0]; self.srcAB = R[1] | R[2]; self.srcC = R[3]
            self.uses = self.srcAB | self.srcC
            self.passes = 8 if "32x32x16" in op else 4
            self.dtok = ops[0]; self.ctok = ops[3]
        elif op.startswith("v_"):
            self.kind = "valu"
            self.dpp = any(m.startswith(("row_", "quad_perm", "wave_")) for m in mods) or op.endswith("_dpp")
            if op.startswith("v_permlane") and "swap" in op:
                self.defs = R[0] | R[1]; self.uses = R[0] | R[1]
            elif "_co_" in op:
                self.defs = R[0] | R[1]; self.uses = U(R[2:])
            else:
                self.defs = R[0]; self.uses = U(R[1:])
                if op.startswith(("v_fmac", "v_dot2c", "v_writelane", "v_pk_fmac")) or self.dpp: self.uses |= R[0]
        elif op.startswith("ds_"):
            self.kind = "ds"
            if op.startswith(("ds_read", "ds_bpermute", "ds_permute", "ds_swizzle")) or "rtn" in op:
                self.defs = R[0]; self.uses = U(R[1:])
            else: self.uses = U(R)
        elif op.startswith(("buffer_", "global_")):
            self.kind = "vmem"
            lds = ("lds" in mods) or ("_lds_" in op)
            self.lds = lds
            if lds: self.uses = U(R) | {("s", "m0")}
            elif "load" in op or ("atomic" in op and "sc0" in mods and op.startswith("global")):
                self.defs = R[0]; self.uses = U(R[1:])
            else:
                self.uses = U(R)
                if "atomic" in op and "sc0" in mods: self.defs = R[0]
            self.wide_store = ("store" in op) and op.endswith(("x3", "x4"))
            if self.wide_store: self.sdata = R[0] if op.startswith("buffer") else R[1]
        elif op.startswith("s_"):
            self.kind = "salu"
            if op.startswith(("s_cmp", "s_cbranch", "s_branch", "s_waitcnt", "s_barrier", "s_endpgm", "s_setprio", "s_sleep")):
                self.uses = U(R)
            else:
                self.defs = R[0] if R else set(); self.uses = U(R[1:])
                if "saveexec" in op: self.defs |= {("s", "exec")}
        self.trans = op.startswith(TRANS)

def need(p, c):
    n = 0
    vg = lambda s: {r for r in s if r[0] in "va"}
    sg = lambda s: {r for r in s if r[0] == "s"}
    if p.kind == "valu":
        if c.kind == "mfma" and (vg(p.defs) & c.uses): n = max(n, 2)
        if c.kind == "valu":
            if c.op.startswith("v_permlane") and (vg(p.defs) & c.uses): n = max(n, 2)
            if c.dpp and (vg(p.defs) & c.uses): n = max(n, 2)
            if c.op.startswith(("v_readlane", "v_readfirstlane")) and (vg(p.defs) & c.uses): n = max(n, 1)
            if p.trans and not c.trans and (vg(p.defs) & c.uses): n = max(n, 1)
            if sg(p.defs) & c.uses:
                n = max(n, 4 if c.op.startswith(("v_readlane", "v_writelane")) else 2)
            if p.op.startswith("v_dot") and (vg(p.defs) & (c.uses | c.defs)) and not (c.op == p.op): n = max(n, 3)
        if p.trans and c.kind in ("ds", "vmem", "mfma") and (vg(p.defs) & c.uses): n = max(n, 2)
        if p.op.startswith("v_dot") and c.kind in ("ds", "vmem", "mfma") and (vg(p.defs) & c.uses): n = max(n, 3)
        if c.kind == "vmem" and (sg(p.defs) & c.uses): n = max(n, 5)
        if c.kind == "salu" and (sg(p.defs) & c.uses): n = max(n, 1)
    if p.kind == "salu":
        if ("s", "m0") in p.defs and c.kind == "vmem" and getattr(c, "lds", False): n = max(n, 1)
    if p.kind == "mfma":
        big = p.passes == 8
        if c.kind == "mfma":
            if p.defs & c.srcAB: n = max(n, 12 if big else 8)
            if p.defs & c.srcC:
                same = (p.dtok == c.ctok and p.passes == c.passes)
                if not same: n = max(n, 10 if big else 6)
            elif p.defs & c.defs:
                n = max(n, 10 if big else 6)
        elif c.kind == "valu":
            if p.defs & (c.uses | c.defs): n = max(n, 12 if big else 8)
            if p.srcC & c.defs: n = max(n, 7 if big else 3)
        elif c.kind in ("ds", "vmem"):
            if p.defs & (c.uses | c.defs): n = max(n, 12 if big else 8)
            if p.srcC & c.defs: n = max(n, 7 if big else 3)
    if p.kind == "vmem" and getattr(p, "wide_store", False):
        if c.defs & p.sdata: n = max(n, 2)
    return n

def fix(lines, verbose=False, window=16):
    out = []; hist = []; added = 0
    for t in lines:
        c = I(t)
        if c.is_instr:
            dist = 0; short = 0; why = None
            for p in reversed(hist):
                if dist >= window: break
                k = need(p, c) - dist
                if k > short: short = k; why = p
                dist += p.states
            if short > 0:
                if verbose: print(f"nop {short}: [{why.text}] -> [{t}]")
                nop = I(f"s_nop {short-1}")
                out.append(nop.text); hist.append(nop); added += short
            hist.append(c)
            if len(hist) > 40: hist = hist[-40:]
        out.append(t)
    return out, added
```

```python
from hazard import I
import re

FENCE = ("s_barrier", "s_waitcnt", "s_cbranch", "s_branch", "s_endpgm", "s_setprio", "s_sleep", "s_memtime", "s_memrealtime")
SCC_W = ("s_add_", "s_sub_", "s_addc", "s_subb", "s_and_", "s_or_", "s_xor_", "s_lshl", "s_lshr", "s_ashr", "s_cmp", "s_min", "s_max", "s_andn2", "s_not", "s_bfe", "s_addk")
SCC_R = ("s_cselect", "s_addc", "s_subb", "s_cbranch_scc")

def parse(t):
    c = I(t)
    if c.is_instr:
        if c.op.startswith(SCC_W): c.defs = c.defs | {("s", "scc")}
        if c.op.startswith(SCC_R): c.uses = c.uses | {("s", "scc")}
        if c.kind in ("valu", "mfma", "ds", "vmem"): c.uses = c.uses | {("s", "exec")}
    return c

def lat(p, c, raw):
    if not raw:
        if p.kind == "mfma" and c.kind != "mfma" and (p.defs & c.defs): return 64 if p.passes == 8 else 40
        if p.kind == "mfma" and (p.srcC & c.defs) and c.kind != "mfma": return 32 if p.passes == 8 else 16
        if p.kind == "mfma" and c.kind == "mfma" and (p.defs & c.defs): return 44 if p.passes == 8 else 28
        if p.kind == "vmem" and getattr(p, "wide_store", False): return 12
        return 4
    if p.kind == "mfma":
        if c.kind == "mfma" and not (p.defs & c.srcAB) and p.dtok == c.ctok and p.passes == c.passes: return 4
        return 64 if p.passes == 8 else 40
    if p.kind == "valu":
        if c.kind == "mfma": return 12
        if c.op.startswith("v_permlane") or c.dpp: return 12
        if any(r[0] == "s" for r in p.defs & c.uses): return 24
        if p.op.startswith("v_dot"): return 16
        return 12 if p.trans else 8
    if p.kind == "ds": return DS_LAT
    if p.kind == "vmem": return VM_LAT
    return 8 if ("s", "m0") in p.defs else 4
DS_LAT = 128
VM_LAT = 800

def schedule_region(lines, verbose=False):
    ins = [parse(t) for t in lines]
    n = len(ins)
    preds = [[] for _ in range(n)]; succs = [[] for _ in range(n)]
    lastw = {}; readers = {}
    last_dsw = None; ds_reads = []; last_vm = None
    for i, c in enumerate(ins):
        e = {}
        for r in c.uses:
            if r in lastw: e[lastw[r]] = max(e.get(lastw[r], 0), lat(ins[lastw[r]], c, True))
        for r in c.defs:
            if r in lastw: e[lastw[r]] = max(e.get(lastw[r], 0), lat(ins[lastw[r]], c, r in c.uses))
            for j in readers.get(r, []):
                if j != i: e[j] = max(e.get(j, 0), lat(ins[j], c, False))
        if c.kind == "ds":
            isw = not c.defs
            if last_dsw is not None: e[last_dsw] = max(e.get(last_dsw, 0), 4)
            if isw:
                for j in ds_reads: e[j] = max(e.get(j, 0), 4)
                last_dsw = i; ds_reads = []
            else: ds_reads.append(i)
        if c.kind == "vmem":
            if last_vm is not None: e[last_vm] = max(e.get(last_vm, 0), 4)
            last_vm = i
        for r in c.uses: readers.setdefault(r, []).append(i)
        for r in c.defs: lastw[r] = i; readers[r] = []
        for j, l in e.items():
            preds[i].append((j, l)); succs[j].append((i, l))
    def vcost(c):
        if c.kind == "mfma": return 8
        if c.kind == "valu": return 8 if c.trans else 4
        return 0
    prio = [0] * n
    for i in reversed(range(n)):
        prio[i] = max([l + prio[j] for j, l in succs[i]] + [4])
    done = [None] * n; npre = [len(p) for p in preds]; ready_t = [0] * n
    avail = [i for i in range(n) if npre[i] == 0]
    t = 0; valu_free = 0; mf_free = 0; vm_free = 0; ds_free = 0; order = []
    while avail:
        def start(i):
            c = ins[i]; s = max(t, ready_t[i])
            if c.kind in ("valu", "mfma"): s = max(s, valu_free)
            if c.kind == "mfma": s = max(s, mf_free)
            if c.op.startswith(("v_pk_", "v_dot")): s = max(s, mf_free + 16)
            if c.kind == "vmem": s = max(s, vm_free)
            if c.kind == "ds": s = max(s, ds_free)
            return s
        st = {i: start(i) for i in avail}
        m = min(st.values())
        cand = [i for i in avail if st[i] <= m]
        i = max(cand, key=lambda k: (prio[k], -k))
        c = ins[i]; s = st[i]
        done[i] = s; order.append(i); avail.remove(i)
        t = s + 4
        if c.kind in ("valu", "mfma"): valu_free = s + vcost(c)
        if c.kind == "mfma": mf_free = s + c.passes * 4
        if c.kind == "vmem": vm_free = s + VM_GAP
        if c.kind == "ds": ds_free = s + (16 if ("b128" in c.op) else 8) * (3 if not c.defs else 1)
        for j, l in succs[i]:
            ready_t[j] = max(ready_t[j], s + l); npre[j] -= 1
            if npre[j] == 0: avail.append(j)
    assert len(order) == n
    if verbose: print(f"  region: {n} instrs, est {t} cycles")
    return [lines[i] for i in order], t
VM_GAP = 48

def schedule(lines, verbose=False):
    out = []; cur = []; tot = 0
    def flush():
        nonlocal cur, tot
        if cur:
            o, t = schedule_region(cur, verbose); out.extend(o); tot += t; cur = []
    for t in lines:
        c = I(t)
        if (not c.is_instr) or c.op.startswith(FENCE) or t.startswith("@"):
            flush(); out.append(t)
        else: cur.append(t)
    flush()
    return out, tot

def autowait(lines):
    out = []; dsq = []; vmq = []
    def trim(q, k):
        if k < len(q): del q[:len(q) - k]
    for t in lines:
        if t.startswith("@wait"):
            tags = t.split()[1:]
            touch = {("t", g) for g in tags}; w = []
            idx = max([k for k, d in enumerate(vmq) if d & touch], default=-1)
            if idx >= 0:
                left = min(len(vmq) - 1 - idx, 62); w.append(f"vmcnt({left})"); trim(vmq, left)
            if "lgkm0" in tags: w.append("lgkmcnt(0)"); trim(dsq, 0)
            if w: out.append("s_waitcnt " + " ".join(w))
            continue
        c = I(t)
        if c.is_instr:
            if c.op == "s_waitcnt":
                m = re.search(r"lgkmcnt\((\d+)\)", t)
                if m: trim(dsq, int(m.group(1)))
                m = re.search(r"vmcnt\((\d+)\)", t)
                if m: trim(vmq, int(m.group(1)))
            else:
                touch = c.uses | c.defs; w = []
                if "@nowait" in t: touch = set()
                for q, nm, mx in ((dsq, "lgkmcnt", 14), (vmq, "vmcnt", 62)):
                    idx = max([k for k, d in enumerate(q) if d & touch], default=-1)
                    if idx >= 0:
                        left = min(len(q) - 1 - idx, mx)
                        w.append(f"{nm}({left})"); trim(q, left)
                if w: out.append("s_waitcnt " + " ".join(sorted(w, reverse=True)))
                if c.kind == "ds": dsq.append(set(c.defs))
                if c.kind == "vmem":
                    d = set(c.defs)
                    m = re.search(r"@def (\S+)", t)
                    if m: d.add(("t", m.group(1)))
                    vmq.append(d)
        out.append(t)
    return out
def strip(lines):
    return [re.sub(r"\s*;\s*@.*$", "", t) for t in lines]
```

```python
import sys, struct
from asmlib import *
from hazard import fix
import sched
from sched import schedule, autowait, strip

NAME = "gated_mix__linear_attn_block__sliding_block__prompt"
WS_KV = 0; WS_QB = 8 << 20; WS_PQ = 12 << 20; WS_O = 16 << 20
WS_KVP = 24 << 20; WS_ZP = 26 << 20; WS_G = 27 << 20; WS_ST = 128 << 20
WS_SIZE = 0x10000000
def f2u(x): return hex(struct.unpack("<I", struct.pack("<f", x))[0])
LOG2E = 1.4426950408889634
EPS = 1e-6
MF32 = "v_mfma_f32_32x32x16_bf16"
MF16 = "v_mfma_f32_16x16x32_bf16"
OOB = "0x7fffffff"

class Cfg:
    stamps = False
    pfd = 4
    verbose = False

def stamp(A, i, cfg):
    if cfg.stamps: A(f"s_memtime s[{60+2*i}:{61+2*i}]")
def dump_stamps(A, n, kidx, cfg, srd_ws=16, lane="v2", wave="s24"):
    if not cfg.stamps: return
    A("s_waitcnt lgkmcnt(0)")
    for i in range(n): A(f"v_writelane_b32 v4, s{60+2*i}, {i}")
    A("s_lshl_b32 s25, s2, 2")
    A(f"s_add_u32 s25, s25, {wave}")
    A("s_lshl_b32 s25, s25, 8")
    A(f"s_add_u32 s25, s25, {WS_ST + kidx*(1<<20)}")
    A(f"v_lshlrev_b32 v3, 2, {lane}")
    A(f"buffer_store_dword v4, v3, s[{srd_ws}:{srd_ws+3}], s25 offen")
    A("s_waitcnt vmcnt(0)")

def decode_hp_rb(A):
    A("v_lshrrev_b32 v1, 6, v0")
    A("v_and_b32 v2, 63, v0")
    A("s_and_b32 s20, s2, 7")
    A("v_readfirstlane_b32 s24, v1")
    A("s_lshr_b32 s21, s2, 3")
    A("s_and_b32 s22, s21, 1")
    A("s_lshl_b32 s23, s20, 1")
    A("s_add_u32 s22, s22, s23")
    A("s_lshr_b32 s21, s21, 1")

def sel_mask(A, dst, tmp):
    A(f"v_lshrrev_b32 v{tmp}, 2, v2")
    A(f"v_lshrrev_b32 v{dst}, 4, v2")
    A(f"v_xor_b32 v{dst}, v{dst}, v{tmp}")
    A(f"v_and_b32 v{dst}, 1, v{dst}")
    A(f"v_add_u32 v{dst}, -1, v{dst}")

def cvt_tile(A, b, dst=None):
    if dst is None: dst = b
    for i in range(8): A(f"v_cvt_pk_bf16_f32 v{dst+i}, v{b+2*i}, v{b+2*i+1}")

ACC = lambda rt, ct: 64 + (rt * 6 + ct) * 16
XSZ, WSZ, WB = 16384, 49152, 32768
SPARE = 131072

def gen_k1(cfg):
    A = Asm()
    VXD, VWD, VXR, VWR, VPF = 10, 14, 20, 24, 26
    XF, WF = 0, 16
    A("s_cmp_ge_u32 s2, 256")
    A("s_cbranch_scc1 K1_end")
    A("s_load_dwordx4 s[4:7], s[0:1], 0")
    A("s_load_dwordx2 s[32:33], s[0:1], 32")
    A("s_load_dwordx2 s[36:37], s[0:1], 48")
    A("s_load_dwordx2 s[34:35], s[0:1], 72")
    stamp(A, 0, cfg)
    decode_hp_rb(A)
    A("s_lshl_b32 s26, s21, 7")
    A("v_lshrrev_b32 v3, 3, v2")
    A("s_lshl_b32 s25, s24, 5")
    A("s_add_u32 s25, s25, s26")
    A("v_add_u32 v3, s25, v3")
    A("v_lshrrev_b32 v4, 4, v2")
    A("v_and_b32 v5, 7, v2")
    A("v_xor_b32 v4, v4, v5")
    A("v_lshlrev_b32 v4, 4, v4")
    A(f"v_lshl_add_u32 v{VXD}, v3, 11, v4")
    A(f"v_xor_b32 v{VXD+1}, 64, v{VXD}")
    A(f"v_add_u32 v{VXD+1}, {16384-1024}, v{VXD+1}")
    A(f"v_add_u32 v{VXD+2}, {2*16384-2048}, v{VXD}")
    A(f"v_add_u32 v{VXD+3}, {2*16384-2048}, v{VXD+1}")
    A("v_bfe_u32 v3, v2, 2, 3")
    A("s_lshr_b32 s29, s24, 1")
    A("s_and_b32 s23, s24, 1")
    A("s_lshl_b32 s25, s29, 4")
    A("v_add_u32 v3, s25, v3")
    A("v_mul_u32_u24 v3, 6144, v3")
    A("v_and_b32 v4, 3, v2")
    A("v_lshlrev_b32 v4, 4, v4")
    A("v_lshrrev_b32 v5, 5, v2")
    A("v_lshl_add_u32 v4, v5, 6, v4")
    A("s_lshl_b32 s25, s22, 7")
    A(f"v_add3_u32 v{VWD}, v3, v4, s25")
    for h in range(2):
        for m in range(3):
            if h or m: A(f"v_add_u32 v{VWD+h*3+m}, {h*8*6144 + m*1024}, v{VWD}")
    A("s_lshl_b32 s27, s24, 12")
    A("s_mul_i32 s28, s24, 6144")
    A(f"s_add_u32 s28, s28, {WB}")
    A("s_mov_b32 s30, 0")
    A("s_mov_b32 s31, 0")
    A("s_mov_b32 s10, 0x400000")
    A("s_mov_b32 s11, 0x20000")
    A("s_mov_b32 s14, 0x600000")
    A("s_mov_b32 s15, 0x20000")
    A("s_cmp_eq_u32 s23, 1")
    A("s_waitcnt lgkmcnt(0)")
    A("s_mov_b32 s8, s4")
    A("s_mov_b32 s9, s5")
    A("s_cselect_b32 s12, s32, s6")
    A("s_cselect_b32 s13, s33, s7")
    stamp(A, 1, cfg)

    def dma_x(s):
        D = [[f"s_add_u32 m0, s27, {(s%2)*XSZ}"]]
        D += [[f"buffer_load_dwordx4 v{VXD+i}, s[8:11], s30 offen offset:{i*1024} lds ; @def X{s}"] for i in range(4)]
        D[-1].append("s_add_u32 s30, s30, 128")
        return D
    def dma_w(s, hf):
        D = []
        for h in range(2):
            D.append([f"s_add_u32 m0, s28, {(s%2)*WSZ + hf*24576 + h*3072}"])
            D += [[f"buffer_load_dwordx4 v{VWD+h*3+m}, s[12:15], s31 offen offset:{m*1024} lds"] for m in range(3)]
        D[-1].append(f"s_add_u32 s31, s31, {32*6144}")
        return D
    def slots(D):
        S = []; pend = []
        for d in D:
            if "m0" in d[0]:
                if S: S[-1] = S[-1] + d
                else: pend = d
            else:
                S.append(pend + d); pend = []
        return S
    L = Asm()
    for D in (dma_x(0), dma_w(0, 0), dma_w(0, 1)):
        for d in D: L.ext(d)
    srd(L, 40, 36, 2048)
    L("s_lshl_b32 s25, s2, 2")
    L("s_add_u32 s25, s25, s24")
    L("s_lshl_b32 s44, s25, 12")
    L("v_lshlrev_b32 v3, 4, v2")
    for i in range(4): L(f"buffer_load_dwordx4 {vr(32+4*i,4)}, v3, s[8:11], s44 offen offset:{i*1024}")
    for i in range(2): L(f"buffer_load_dwordx4 {vr(48+4*i,4)}, v3, s[40:43], 0 offen offset:{i*1024}")
    for D in (dma_w(1, 0), dma_x(1), dma_w(1, 1)):
        for d in D: L.ext(d)
    L("v_and_b32 v3, 1, v2")
    L("s_lshl_b32 s25, s21, 1")
    L("s_add_u32 s25, s25, s29")
    L("s_lshl_b32 s25, s25, 1")
    L("s_add_u32 s25, s25, 128")
    L("v_add_u32 v3, s25, v3")
    L("v_lshrrev_b32 v4, 3, v2")
    L("v_lshl_add_u32 v3, v4, 6, v3")
    L("v_mul_u32_u24 v3, 6144, v3")
    L("v_bfe_u32 v6, v2, 1, 2")
    L("v_lshl_add_u32 v3, v6, 11, v3")
    L("s_lshl_b32 s25, s22, 7")
    L("v_add_u32 v3, s25, v3")
    L(f"v_mov_b32 v7, {OOB}")
    L("v_cmp_gt_u32 vcc, 3, v6")
    L("v_cndmask_b32 v3, v7, v3, vcc")
    L(f"v_cmp_gt_u32 vcc, {cfg.pfd}, v4")
    L("v_cndmask_b32 v6, v7, v3, vcc")
    L("buffer_load_dword v1, v6, s[12:15], 0 offen ; @nowait")
    L("v_cmp_eq_u32 vcc, 0, v4")
    L(f"v_cndmask_b32 v{VPF}, v7, v3, vcc")
    L(f"s_mov_b32 s38, {cfg.pfd*64*6144}")
    stamp(L, 2, cfg)
    L("v_and_b32 v3, 31, v2")
    L("v_bfe_u32 v4, v2, 1, 3")
    L("v_xor_b32 v4, v4, v5")
    L("v_lshlrev_b32 v4, 4, v4")
    L("v_lshl_add_u32 v4, v3, 7, v4")
    L("s_lshl_b32 s25, s29, 13")
    L(f"v_add_u32 v{VXR}, s25, v4")
    for j in range(1, 4): L(f"v_xor_b32 v{VXR+j}, {j*32}, v{VXR}")
    L("v_mul_u32_u24 v3, 3072, v5")
    L("v_bfe_u32 v4, v2, 2, 2")
    L("v_lshl_add_u32 v3, v4, 6, v3")
    L("v_bfe_u32 v4, v2, 4, 1")
    L("v_lshl_add_u32 v3, v4, 5, v3")
    L("v_and_b32 v4, 3, v2")
    L("v_lshl_add_u32 v3, v4, 3, v3")
    L("s_lshl_b32 s25, s23, 9")
    L(f"s_add_u32 s25, s25, {WB}")
    L(f"v_add_u32 v{VWR}, s25, v3")
    L(f"v_add_u32 v{VWR+1}, {WSZ}, v{VWR}")
    srd(L, 16, 34, WS_SIZE)
    L(f"s_mov_b32 s45, {f2u(EPS)}")
    for rt in range(2):
        for ct in range(2):
            for i in range(16): L(f"v_mov_b32 v{ACC(rt,ct)+i}, s45")

    def gate_code():
        G = []
        G.append("v_mov_b32 v56, 0"); G.append("v_mov_b32 v57, 0")
        for r in range(2):
            for i in range(8): G.append(f"v_dot2_f32_bf16 v{56+r}, v{32+8*r+i}, v{48+i}, v{56+r}")
        G.append("v_permlane32_swap_b32 v56, v57")
        G.append("v_add_f32 v56, v56, v57")
        for k in (8, 4, 2, 1): G.append(f"v_add_f32_dpp v56, v56, v56 row_ror:{k} row_mask:0xf bank_mask:0xf")
        G.append("v_add_f32_dpp v56, v56, v56 row_bcast:15 row_mask:0xa bank_mask:0xf")
        G.append(f"v_mul_f32 v56, {f2u(-LOG2E)}, v56")
        G.append("v_exp_f32 v56, v56")
        G.append("v_add_f32 v56, 1.0, v56")
        G.append("v_rcp_f32 v56, v56")
        G.append("v_lshlrev_b32 v57, 2, v5")
        G.append("v_and_b32 v58, 31, v2")
        G.append("v_cmp_eq_u32 vcc, 31, v58")
        G.append("v_cndmask_b32 v57, v7, v57, vcc")
        G.append("s_lshr_b32 s44, s44, 9")
        G.append(f"s_add_u32 s44, s44, {WS_G}")
        G.append("buffer_store_dword v56, v57, s[16:19], s44 offen")
        return G

    def reads(s, j):
        st = j % 2; buf = s % 2
        xr = [f"ds_read_b128 {ar(XF+st*8+rt*4,4)}, v{VXR+j} offset:{buf*XSZ + rt*4096}" for rt in range(2)]
        wr = [f"ds_read_b64_tr_b16 {ar(WF+st*24+ct*4+rd*2,2)}, v{VWR+buf} offset:{j*12288 + (ct//3)*6144 + (ct%3)*1024 + rd*256}"
              for ct in range(6) for rd in range(2)]
        return [xr[0]] + wr[:4] + [xr[1]] + wr[4:]
    def mfmas(s, j):
        st = j % 2; M = []
        for ct in range(6):
            for rt in range(2):
                acc = vr(ACC(rt, ct), 16)
                x = ar(XF+st*8+rt*4, 4); w = ar(WF+st*24+ct*4, 4)
                a, b = (w, x) if ct in (0, 3, 4) else (x, w)
                c = "0" if (s == 0 and j == 0 and ct >= 2) else acc
                M.append(f"{MF32} {acc}, {a}, {b}, {c} ; @nowait")
        return M
    BG = 9
    GX = [34, 36, 38, 40]; GW1 = [43, 46, 49, 52, 55, 58]; GPF = 61; GW0 = [16, 19, 22, 25, 28, 31]
    GX, GW1, GPF, GW0 = getattr(cfg, "gaps", (GX, GW1, GPF, GW0))
    F = {}
    def put(G, lst): F.setdefault(G, []).extend(lst)
    for s in range(16):
        for j in range(4):
            nxt = (s, j+1) if j < 3 else (s+1, 0)
            if nxt[0] < 16:
                for i, r in enumerate(reads(*nxt)): put(48*s + 12*j + i//2, [r + " ; @nowait"])
        put(48*s + BG, [f"@wait W{s}_1 lgkm0", "s_barrier"])
        if s < 15: put(48*s + 24 + BG, [f"@wait X{s+1} W{s+1}_0 lgkm0", "s_barrier"])
    for s in range(14):
        for G, D in ((GW0, dma_w(s+2, 0)), (GX, dma_x(s+2)), (GW1, dma_w(s+2, 1))):
            S = slots(D)
            put(48*s + G[0] - 1, [S[0][0]])
            S[0] = S[0][1:]
            for g, d in zip(G, S): put(48*s + g, d)
        put(48*s + GPF, [f"buffer_load_dword v1, v{VPF}, s[12:15], s38 offen ; @nowait", f"s_add_u32 s38, s38, {64*6144}"])
    for s in range(16):
        for j in range(4): put(48*s + 12*j + 11, ["s_waitcnt lgkmcnt(0)"])
    L.ext(gate_code())
    L("@wait X0 W0_0")
    L("s_barrier")
    stamp(L, 3, cfg)
    L.ext([r + " ; @nowait" for r in reads(0, 0)])
    L("s_waitcnt lgkmcnt(0)")
    for s in range(16):
        L(f";@stage {s}")
        for j in range(4):
            for g, m in enumerate(mfmas(s, j)):
                L(m); L.ext(F.get(48*s + 12*j + g, []))
    L(";@stage 16")
    lin = strip(autowait(L.L))
    raw = autowait(L.L)
    idx = {int(t.split()[1]): i for i, t in enumerate(raw) if t.startswith(";@stage")}
    seg = lambda a, b: [t for t in lin[idx[a]:idx[b]] if t]
    for s in range(4, 14, 2): assert seg(s, s+2) == seg(2, 4), s
    A.ext([t for t in lin[:idx[2]] if t])
    stamp(A, 4, cfg)
    A("s_mov_b32 s39, 6")
    A(".p2align 6")
    A("K1_loop:")
    body = seg(2, 4)
    assert body[-1] == "s_waitcnt lgkmcnt(0)" and body[-2].startswith("v_mfma")
    A.ext(body[:-1])
    A("s_sub_u32 s39, s39, 1")
    A("s_cmp_lg_u32 s39, 0")
    A(body[-1])
    A("s_cbranch_scc1 K1_loop")
    stamp(A, 5, cfg)
    A.ext(seg(14, 16))
    stamp(A, 6, cfg)
    E = Asm()
    SEL, ZA, KVA, TMP = 8, 12, 16, 32
    E("s_lshl_b32 s25, s22, 1")
    E("s_add_u32 s46, s25, s23")
    E("s_lshl_b32 s25, s21, 2")
    E("s_lshl_b32 s47, s29, 1")
    E("s_add_u32 s47, s47, s25")
    E("s_lshl_b32 s25, s46, 6")
    E("s_add_u32 s47, s47, s25")
    E("s_lshl_b32 s48, s47, 12")
    E("s_add_u32 s49, s48, 4096")
    E("s_lshl_b32 s50, s47, 11")
    E(f"s_add_u32 s51, s50, {WS_PQ}")
    E(f"s_add_u32 s50, s50, {WS_QB}")
    E("v_lshlrev_b32 v3, 4, v2")
    for rt in range(2):
        for p, ct in enumerate((4, 5)):
            cvt_tile(E, ACC(rt, ct))
            for kk in range(2):
                E(f"buffer_store_dwordx4 {vr(ACC(rt,ct)+4*kk,4)}, v3, s[16:19], s{48+rt} offen offset:{p*2048+kk*1024}")
    E(f"s_mov_b32 s52, {f2u(LOG2E * 32 ** -0.5)}")
    E("s_mov_b32 s53, s52")
    for rt in range(2):
        b = ACC(rt, 3)
        for i in range(8): E(f"v_pk_mul_f32 {vr(b+2*i,2)}, {vr(b+2*i,2)}, s[52:53]")
        cvt_tile(E, b)
        for kk in range(2):
            E(f"buffer_store_dwordx4 {vr(b+4*kk,4)}, v3, s[16:19], s50 offen offset:{rt*2048+kk*1024}")
    E(f"s_mov_b32 s54, {f2u(LOG2E)}")
    E("s_mov_b32 s55, s54")
    E(f"v_mov_b32 v6, {f2u(-EPS*LOG2E)}")
    E("v_mov_b32 v7, v6")
    def phi(b, t):
        for i in range(8): E(f"v_pk_fma_f32 {vr(t+2*i,2)}, {vr(b+2*i,2)}, s[54:55], v[6:7]")
        for i in range(16):
            E(f"v_exp_f32_e64 v{t+i}, v{t+i} clamp")
            E(f"v_max_f32 v{b+i}, s45, v{b+i}")
        for i in range(8): E(f"v_pk_add_f32 {vr(b+2*i,2)}, {vr(b+2*i,2)}, {vr(t+2*i,2)}")
        cvt_tile(E, b)
    sel_mask(E, SEL, SEL+1)
    E(f"v_and_b32 v{SEL}, 0x3f803f80, v{SEL}")
    for i in range(1, 4): E(f"v_mov_b32 v{SEL+i}, v{SEL}")
    for rt in range(2):
        phi(ACC(rt, 1), TMP + 16*rt)
        cvt_tile(E, ACC(rt, 2))
    for rt in range(2): phi(ACC(rt, 0), TMP + 16*rt)
    for rt in range(2):
        for kk in range(2):
            E(f"buffer_store_dwordx4 {vr(ACC(rt,0)+4*kk,4)}, v3, s[16:19], s51 offen offset:{rt*2048+kk*1024}")
    E("@fence")
    for rt in range(2):
        for kk in range(2):
            first = rt == 0 and kk == 0
            pk = vr(ACC(rt,1)+4*kk, 4); va = vr(ACC(rt,2)+4*kk, 4)
            E(f"{MF32} {vr(KVA,16)}, {pk}, {va}, {'0' if first else vr(KVA,16)}")
            E(f"{MF16} {vr(ZA,4)}, {vr(SEL,4)}, {pk}, {'0' if first else vr(ZA,4)}")
    E("s_lshl_b32 s25, s24, 12")
    E(f"s_add_u32 s25, s25, {SPARE}")
    E("v_add_u32 v4, s25, v3")
    for q in range(4): E(f"ds_write_b128 v4, {vr(KVA+4*q,4)} offset:{q*1024}")
    E("s_lshl_b32 s25, s23, 12")
    E("s_lshl_b32 s44, s29, 11")
    E("s_add_u32 s25, s25, s44")
    E(f"s_add_u32 s25, s25, {SPARE}")
    E("v_add_u32 v5, s25, v3")
    E("s_lshl_b32 s25, s46, 4")
    E("s_add_u32 s25, s25, s21")
    E("s_lshl_b32 s25, s25, 1")
    E("s_add_u32 s25, s25, s29")
    E("s_lshl_b32 s56, s25, 7")
    E(f"s_add_u32 s56, s56, {WS_ZP}")
    E("s_lshl_b32 s57, s25, 11")
    E(f"s_add_u32 s57, s57, {WS_KVP}")
    E("v_and_b32 v6, 31, v2")
    E("v_lshlrev_b32 v6, 2, v6")
    E(f"buffer_store_dword v{ZA}, v6, s[16:19], s56 offen")
    E("s_waitcnt lgkmcnt(0)")
    E("s_barrier")
    for w2 in range(2):
        for q in range(2): E(f"ds_read_b128 {vr(TMP+8*w2+4*q,4)}, v5 offset:{w2*8192+q*1024}")
    for i in range(4): E(f"v_pk_add_f32 {vr(TMP+2*i,2)}, {vr(TMP+2*i,2)}, {vr(TMP+8+2*i,2)}")
    for q in range(2): E(f"buffer_store_dwordx4 {vr(TMP+4*q,4)}, v3, s[16:19], s57 offen offset:{q*1024}")
    e, est = schedule(E.L, cfg.verbose)
    e = [t for t in strip(autowait(e)) if not t.startswith("@")]
    A.ext(e)
    stamp(A, 7, cfg)
    A("s_waitcnt vmcnt(0)")
    stamp(A, 8, cfg)
    dump_stamps(A, 9, 0, cfg)
    A("K1_end:")
    out, n = fix(A.L, cfg.verbose)
    if cfg.verbose: print("K1 nops", n)
    return out, SPARE + 16384, 320

class AR:
    SEL = 8; SELM = 12; LADDR = 13; QF = 16; PQF = 32; MP = 48; MX = 56
    MD = 64; MO = 80; NM = 96; O = 128; S = 160; P = 224; SUM = 248
    KF = 0; VF = 80

def masks(A):
    R = AR
    A("v_and_b32 v4, 31, v2")
    A("v_lshrrev_b32 v5, 5, v2")
    A("v_lshlrev_b32 v5, 2, v5")
    A("v_sub_u32 v4, v5, v4")
    A("s_mov_b32 s58, 0xffff")
    for i in range(16):
        c = 8 * (i // 4) + i % 4
        A(f"v_add_u32 v{R.MD+i}, {c-1}, v4")
        A(f"v_ashrrev_i32 v{R.MD+i}, 31, v{R.MD+i}")
    for i in range(8): A(f"v_bfi_b32 v{R.MP+i}, s58, v{R.MD+2*i}, v{R.MD+2*i+1}")
    for i in range(16):
        A(f"v_and_b32 v{R.MO+i}, 0xff800000, v{R.MD+i}")
        A(f"v_xor_b32 v{R.MD+i}, 0xff800000, v{R.MO+i}")

def attn_body(nv):
    R = AR; A = Asm(); lo = 10 - nv
    for i in range(9, lo - 1, -1):
        for kk in range(2): A(f"ds_read_b128 {ar(R.KF+i*8+kk*4,4)}, v{R.LADDR} offset:{i*4096+kk*1024}")
    for i in range(9, lo - 1, -1):
        for kk in range(2): A(f"ds_read_b128 {ar(R.VF+i*8+kk*4,4)}, v{R.LADDR} offset:{i*4096+2048+kk*1024}")
    sb = [0]; pb = [0]
    units = lambda q: [i for i in range(8 + q, q - 1, -1) if i >= lo]
    def qk(q, i, c):
        s = R.S + 16 * (sb[0] % 4); sb[0] += 1
        A(f"{MF32} {vr(s,16)}, {ar(R.KF+i*8,4)}, {vr(R.QF+8*q,4)}, {c}")
        A(f"{MF32} {vr(s,16)}, {ar(R.KF+i*8+4,4)}, {vr(R.QF+8*q+4,4)}, {vr(s,16)}")
        return s
    def pass1(q, i, first):
        c = vr(R.MD, 16) if i == 8 + q else (vr(R.MO, 16) if i == q else "0")
        s = qk(q, i, c)
        for k in range(8):
            m = R.MX + 2 * q + k % 2
            if first and k < 2: A(f"v_max_f32 v{m}, v{s+2*k}, v{s+2*k+1}")
            else: A(f"v_max3_f32 v{m}, v{s+2*k}, v{s+2*k+1}, v{m}")
    def finmax(q):
        m = R.MX + 2 * q
        A(f"v_max_f32 v{m}, v{m}, v{m+1}")
        A(f"v_mov_b32 v{m+1}, v{m}")
        A(f"v_permlane32_swap_b32 v{m}, v{m+1}")
        for k in range(16): A(f"v_min_f32_e64 v{R.NM+16*q+k}, -v{m}, -v{m+1}")
    def pass2(q, i, first):
        s = qk(q, i, vr(R.NM + 16 * q, 16))
        p = R.P + 8 * (pb[0] % 3); pb[0] += 1
        for kk in range(2):
            for k in range(8): A(f"v_exp_f32 v{s+8*kk+k}, v{s+8*kk+k}")
            for k in range(4):
                d = p + 4 * kk + k
                A(f"v_cvt_pk_bf16_f32 v{d}, v{s+8*kk+2*k}, v{s+8*kk+2*k+1}")
                if i == 8 + q: A(f"v_and_b32 v{d}, v{R.MP+4*kk+k}, v{d}")
                elif i == q: A(f"v_bfi_b32 v{d}, v{R.MP+4*kk+k}, 0, v{d}")
            f = first and kk == 0
            o = vr(R.O + 16 * q, 16); sm = vr(R.SUM + 4 * q, 4)
            A(f"{MF32} {o}, {ar(R.VF+i*8+4*kk,4)}, {vr(p+4*kk,4)}, {'0' if f else o}")
            A(f"{MF16} {sm}, {vr(R.SEL,4)}, {vr(p+4*kk,4)}, {'0' if f else sm}")
    u0, u1 = units(0), units(1)
    for n, i in enumerate(u0): pass1(0, i, n == 0)
    finmax(0)
    for n in range(max(len(u0), len(u1))):
        if n < len(u1): pass1(1, u1[n], n == 0)
        if n < len(u0): pass2(0, u0[n], n == 0)
    finmax(1)
    for n, i in enumerate(u1): pass2(1, i, n == 0)
    return A.L

def norm_store(A, o, den, soff, off, eps=False):
    if eps: A(f"v_add_f32 v{den}, s45, v{den}")
    A(f"v_rcp_f32 v{den}, v{den}")
    for k in range(16): A(f"v_mul_f32 v{o+k}, v{den}, v{o+k}")
    cvt_tile(A, o)
    for kk in range(2): A(f"buffer_store_dwordx4 {vr(o+4*kk,4)}, v3, s[16:19], s{soff} offen offset:{off+kk*1024}")

def gen_k2(cfg):
    A = Asm(); R = AR
    XCH = 98304
    A("s_cmp_ge_u32 s2, 256")
    A("s_cbranch_scc1 K2_end")
    A("s_load_dwordx2 s[34:35], s[0:1], 72")
    stamp(A, 0, cfg)
    decode_hp_rb(A)
    A("s_lshr_b32 s29, s24, 1")
    A("s_and_b32 s23, s24, 1")
    A("s_lshl_b32 s25, s22, 1")
    A("s_add_u32 s46, s25, s23")
    A("s_lshl_b32 s26, s21, 2")
    A("v_lshlrev_b32 v3, 4, v2")
    A(f"s_mov_b32 s45, {f2u(EPS)}")
    A("s_waitcnt lgkmcnt(0)")
    srd(A, 16, 34, WS_SIZE)
    A("s_mul_i32 s27, s29, 6")
    A("s_add_u32 s28, s27, 6")
    A("s_sub_i32 s25, 8, s26")
    A("s_max_i32 s27, s27, s25")
    A("s_lshl_b32 s30, s46, 6")
    A("s_add_u32 s30, s30, s26")
    A("s_add_u32 s30, s30, s27")
    A("s_sub_u32 s30, s30, 8")
    A("s_lshl_b32 s30, s30, 12")
    A("s_mul_i32 s31, s23, 49152")
    A("s_lshl_b32 s25, s27, 12")
    A("s_add_u32 s31, s31, s25")
    A("s_cmp_ge_i32 s27, s28")
    A("s_cbranch_scc1 K2_nodma")
    A("K2_dma:")
    A("s_mov_b32 m0, s31")
    A("s_add_u32 s27, s27, 1")
    for i in range(4): A(f"buffer_load_dwordx4 v3, s[16:19], s30 offen offset:{i*1024} lds")
    A("s_add_u32 s30, s30, 4096")
    A("s_add_u32 s31, s31, 4096")
    A("s_cmp_lt_i32 s27, s28")
    A("s_cbranch_scc1 K2_dma")
    A("K2_nodma:")
    L = Asm()
    L("s_lshl_b32 s47, s29, 1")
    L("s_add_u32 s47, s47, s26")
    L("s_lshl_b32 s25, s46, 6")
    L("s_add_u32 s25, s25, s47")
    L("s_lshl_b32 s50, s25, 11")
    L(f"s_add_u32 s51, s50, {WS_PQ}")
    L(f"s_add_u32 s50, s50, {WS_QB}")
    for i in range(4): L(f"buffer_load_dwordx4 {vr(R.QF+4*i,4)}, v3, s[16:19], s50 offen offset:{i*1024}")
    for i in range(4): L(f"buffer_load_dwordx4 {vr(R.PQF+4*i,4)}, v3, s[16:19], s51 offen offset:{i*1024}")
    L("s_lshl_b32 s57, s46, 16")
    L("s_lshl_b32 s25, s29, 11")
    L("s_add_u32 s57, s57, s25")
    L(f"s_add_u32 s57, s57, {WS_KVP}")
    KT = 128
    for p in range(16):
        for q in range(2): L(f"buffer_load_dwordx4 {vr(KT+8*p+4*q,4)}, v3, s[16:19], s57 offen offset:{q*1024}")
        L("s_add_u32 s57, s57, 4096")
    L("s_lshl_b32 s56, s46, 12")
    L(f"s_add_u32 s56, s56, {WS_ZP}")
    L("v_lshlrev_b32 v6, 2, v2")
    ZT = 96
    for p in range(16): L(f"buffer_load_dword v{ZT+p}, v6, s[16:19], s56 offen offset:{p*256}")
    stamp(L, 1, cfg)
    masks(L)
    sel_mask(L, R.SELM, R.SEL)
    L(f"v_and_b32 v{R.SEL}, 0x3f803f80, v{R.SELM}")
    for i in range(1, 4): L(f"v_mov_b32 v{R.SEL+i}, v{R.SEL}")
    L("s_mul_i32 s25, s23, 49152")
    L("s_lshl_b32 s44, s29, 13")
    L("s_add_u32 s25, s25, s44")
    L(f"v_add_u32 v{R.LADDR}, s25, v3")
    L("s_lshl_b32 s48, s47, 17")
    L("s_lshl_b32 s25, s46, 11")
    L("s_add_u32 s48, s48, s25")
    L(f"s_add_u32 s48, s48, {WS_O}")
    L("s_add_u32 s49, s48, 0x20000")
    L("s_add_u32 s52, s48, 0x10000")
    L("s_add_u32 s53, s49, 0x10000")
    for p in range(1, 16):
        for i in range(4): L(f"v_pk_add_f32 {vr(KT+2*i,2)}, {vr(KT+2*i,2)}, {vr(KT+8*p+2*i,2)}")
    for i in range(4): L(f"v_cvt_pk_bf16_f32 v{KT+i}, v{KT+2*i}, v{KT+2*i+1}")
    L("s_lshl_b32 s25, s23, 11")
    L(f"s_add_u32 s25, s25, {XCH}")
    L("v_add_u32 v7, s25, v3")
    L("s_lshl_b32 s44, s29, 10")
    L("v_add_u32 v4, s44, v7")
    L(f"ds_write_b128 v4, {vr(KT,4)}")
    for st in (8, 4, 2, 1):
        for p in range(st): L(f"v_add_f32 v{ZT+p}, v{ZT+p}, v{ZT+p+st}")
    L(f"v_mov_b32 v{ZT+1}, v{ZT}")
    L(f"v_permlane32_swap_b32 v{ZT}, v{ZT+1}")
    L(f"v_add_f32 v{ZT}, v{ZT}, v{ZT+1}")
    L("s_lshl_b32 s25, s24, 8")
    L(f"s_add_u32 s25, s25, {XCH+4096}")
    L("v_add_u32 v4, s25, v6")
    L(f"ds_write_b32 v4, v{ZT}")
    L("v_lshrrev_b32 v5, 5, v2")
    L("v_lshlrev_b32 v5, 4, v5")
    L("v_add_u32 v5, s25, v5")
    L("s_waitcnt vmcnt(0) lgkmcnt(0)")
    L("s_barrier")
    stamp(L, 2, cfg)
    if cfg.stamps: L("s_waitcnt lgkmcnt(0)")
    A.ext(strip(autowait(L.L)))
    B = Asm()
    KVF, ZF = 224, 96
    for kk in range(2): B(f"ds_read_b128 {vr(KVF+4*kk,4)}, v7 offset:{kk*1024}")
    for g in range(4): B(f"ds_read_b128 {vr(ZF+4*g,4)}, v5 offset:{g*32}")
    cvt_tile(B, ZF)
    for i in range(8): B(f"v_and_b32 v{ZF+i}, v{R.SELM}, v{ZF+i}")
    for q in range(2):
        o = vr(R.O+16*q, 16); sm = vr(R.SUM+4*q, 4)
        for kk in range(2):
            B(f"{MF32} {o}, {vr(KVF+4*kk,4)}, {vr(R.PQF+8*q+4*kk,4)}, {'0' if kk == 0 else o}")
            B(f"{MF16} {sm}, {vr(ZF+4*kk,4)}, {vr(R.PQF+8*q+4*kk,4)}, {'0' if kk == 0 else sm}")
        norm_store(B, R.O+16*q, R.SUM+4*q, 48+q, 0, eps=True)
    b, est = schedule(B.L, cfg.verbose)
    A.ext(strip(autowait(b)))
    stamp(A, 3, cfg)
    if cfg.stamps: A("s_waitcnt lgkmcnt(0)")
    A("s_nop 7")
    for nv in (2, 4, 6, 8):
        A(f"s_cmp_eq_u32 s47, {nv-2}")
        A(f"s_cbranch_scc1 K2_att{nv}")
    for nv in (10, 8, 6, 4, 2):
        A(f"K2_att{nv}:")
        C = Asm(); C.ext(attn_body(nv))
        for q in range(2): norm_store(C, R.O+16*q, R.SUM+4*q, 52+q, 0)
        c, est = schedule(C.L, cfg.verbose)
        A.ext(strip(autowait(c)))
        if nv != 2: A("s_branch K2_done")
    A("K2_done:")
    stamp(A, 4, cfg)
    A("s_waitcnt vmcnt(0)")
    stamp(A, 5, cfg)
    dump_stamps(A, 6, 1, cfg)
    A("K2_end:")
    out, n = fix(A.L, cfg.verbose)
    if cfg.verbose: print("K2 nops", n)
    return out, XCH + 8192, 416

def gen_k3(cfg):
    A = Asm()
    NS = 8
    PD = getattr(cfg, "k3_pd", 4)
    OD = getattr(cfg, "k3_od", 24)
    OF = 128
    WFR = 32
    ACCA, ACCB = 64, 96
    A("s_cmp_ge_u32 s2, 256")
    A("s_cbranch_scc1 K3_end")
    A("s_load_dwordx2 s[4:5], s[0:1], 16")
    A("s_load_dwordx2 s[6:7], s[0:1], 40")
    A("s_load_dwordx2 s[32:33], s[0:1], 56")
    A("s_load_dwordx2 s[34:35], s[0:1], 72")
    stamp(A, 0, cfg)
    A("v_lshrrev_b32 v1, 6, v0")
    A("v_and_b32 v2, 63, v0")
    A("s_and_b32 s20, s2, 7")
    A("v_readfirstlane_b32 s24, v1")
    A("s_lshr_b32 s21, s2, 3")
    A("s_lshr_b32 s22, s20, 1")
    A("s_lshl_b32 s22, s22, 2")
    A("s_and_b32 s25, s21, 3")
    A("s_add_u32 s22, s22, s25")
    A("s_and_b32 s23, s20, 1")
    A("s_lshl_b32 s23, s23, 3")
    A("s_lshr_b32 s25, s21, 2")
    A("s_add_u32 s23, s23, s25")
    A("s_lshl_b32 s26, s22, 2")
    A("s_add_u32 s26, s26, s24")
    A("v_bfe_u32 v3, v2, 2, 3")
    A("s_lshl_b32 s25, s24, 5")
    A("v_add_u32 v3, s25, v3")
    A("v_lshlrev_b32 v3, 11, v3")
    A("v_and_b32 v4, 3, v2")
    A("v_lshlrev_b32 v4, 4, v4")
    A("v_lshrrev_b32 v5, 5, v2")
    A("v_lshl_add_u32 v4, v5, 6, v4")
    A("s_lshl_b32 s25, s23, 7")
    A("v_add3_u32 v10, v3, v4, s25")
    for i in range(1, 4): A(f"v_add_u32 v{10+i}, {i*16384 - i*1024}, v10")
    A("v_lshlrev_b32 v3, 4, v2")
    A("s_lshl_b32 s27, s24, 12")
    A("s_lshl_b32 s30, s26, 17")
    A(f"s_add_u32 s30, s30, {WS_O}")
    A("s_waitcnt lgkmcnt(0)")
    srd(A, 8, 4, 0x200000)
    srd(A, 12, 6, 0x200000)
    srd(A, 16, 34, WS_SIZE)
    srd(A, 40, 32, 0x400000)
    L = Asm()
    def dma(s):
        sd = 8 if s < 8 else 12
        D = [[f"s_add_u32 m0, s27, {(s%NS)*16384}", f"s_mov_b32 s31, {(s%8)*128*2048}"]]
        D += [[f"buffer_load_dwordx4 v{10+i}, s[{sd}:{sd+3}], s31 offen offset:{i*1024} lds ; @def W{s}"] for i in range(4)]
        return D
    def oload(k):
        r = [f"buffer_load_dwordx4 {vr(OF+4*(k%32),4)}, v3, s[16:19], s30 offen offset:{(k%4)*1024}"]
        if k % 4 == 3: r.append("s_add_u32 s30, s30, 4096")
        return r
    nxt = 0
    for s in range(PD):
        for d in dma(s): L.ext(d)
        while nxt < min(OD, (s+1)*8): L.ext(oload(nxt)); nxt += 1
    while nxt < OD: L.ext(oload(nxt)); nxt += 1
    L("v_and_b32 v6, 31, v2")
    L("s_lshl_b32 s25, s26, 5")
    L("v_add_u32 v6, s25, v6")
    L("v_lshlrev_b32 v7, 2, v6")
    L(f"s_mov_b32 s44, {WS_G}")
    L("buffer_load_dword v8, v7, s[16:19], s44 offen")
    L("v_lshlrev_b32 v6, 11, v6")
    L("v_lshl_add_u32 v6, v5, 4, v6")
    L("s_lshl_b32 s25, s23, 7")
    L("v_add_u32 v6, s25, v6")
    L("v_bfe_u32 v4, v2, 2, 2")
    L("v_lshl_add_u32 v4, v5, 2, v4")
    L("v_lshlrev_b32 v4, 6, v4")
    L("v_bfe_u32 v7, v2, 4, 1")
    L("v_lshl_add_u32 v4, v7, 5, v4")
    L("v_and_b32 v7, 1, v2")
    L("v_lshl_add_u32 v4, v7, 4, v4")
    L("v_bfe_u32 v7, v2, 1, 1")
    L("v_lshl_add_u32 v14, v7, 3, v4")
    L("v_add_u32 v15, 65536, v14")
    def reads(k):
        s = k // 8; base = (s % NS) * 16384 + (k % 8) * 2048
        va = 14 + base // 65536; base %= 65536
        return [f"ds_read_b64_tr_b16 {vr(WFR+8*(k%4)+4*ct+2*rd,2)}, v{va} offset:{base + rd*1024 + ct*512}" for ct in range(2) for rd in range(2)]
    RA = 2
    L("@wait W0")
    L("s_barrier")
    stamp(L, 1, cfg)
    if cfg.stamps: L("s_waitcnt lgkmcnt(0)")
    for k in range(RA): L.ext(reads(k))
    for k in range(128):
        s = k // 8
        acc = ACCA if k < 64 else ACCB
        fill = [[], []]
        kr = k + RA
        if kr < 128:
            if kr % 8 == 0: fill[0] += [f"@wait W{kr//8}", "s_barrier"]
            rr = reads(kr); fill[0] += rr[:2]; fill[1] += rr[2:]
        if nxt < 128: fill[1] += oload(nxt); nxt += 1
        sd = s + PD
        if sd < 16 and k % 2 == 0:
            D = dma(sd); i = (k % 8) // 2
            if i == 0: fill[0] = D[0] + fill[0]
            fill[0] += D[1 + i]
        for ct in range(2):
            a = vr(acc + 16*ct, 16)
            L(f"{MF32} {a}, {vr(WFR+8*(k%4)+4*ct,4)}, {vr(OF+4*(k%32),4)}, {'0' if k % 64 == 0 else a}")
            L.ext(fill[ct])
    assert PD + 2 <= NS
    stamp(L, 2, cfg)
    for ct in range(2):
        for i in range(16):
            L(f"v_sub_f32 v{ACCA+16*ct+i}, v{ACCA+16*ct+i}, v{ACCB+16*ct+i}")
            L(f"v_fma_f32 v{ACCA+16*ct+i}, v8, v{ACCA+16*ct+i}, v{ACCB+16*ct+i}")
        cvt_tile(L, ACCA+16*ct)
        for u in range(2): L(f"buffer_store_dwordx4 {vr(ACCA+16*ct+4*u,4)}, v6, s[40:43], 0 offen offset:{ct*64+u*32}")
    A.ext(strip(autowait(L.L)))
    A("s_waitcnt vmcnt(0)")
    stamp(A, 3, cfg)
    dump_stamps(A, 4, 2, cfg)
    A("K3_end:")
    out, n = fix(A.L, cfg.verbose)
    if cfg.verbose: print("K3 nops", n)
    return out, NS * 16384, 256

HEADER = open("cdna_kernels/" + NAME + ".s.ref").read().split("; Override launch")[0] if __name__ == "__main__" else ""
def build(cfg, header=""):
    ks = [("qkv_kernel", gen_k1), ("attn_kernel", gen_k2), (NAME + "_kernel", gen_k3)]
    parts = [(n,) + g(cfg) for n, g in ks]
    t = header
    for n, code, lds, vg in parts: t += f"; @launch kernel={n} grid=(256,1,1) block=(256,1,1) lds={lds}\n"
    t += '.amdgcn_target "amdgcn-amd-amdhsa--gfx950"\n.text\n'
    for n, code, lds, vg in parts:
        t += f".globl {n}\n.p2align 8\n.type {n},@function\n{n}:\n" + "\n".join(code) + "\ns_endpgm\n"
    for n, code, lds, vg in parts: t += kernel_desc(n, vg, 102, 256)
    return t

if __name__ == "__main__":
    cfg = Cfg(); cfg.verbose = "-v" in sys.argv
    out = [a for a in sys.argv[1:] if not a.startswith("-")]
    path = out[0] if out else "cdna_kernels/" + NAME + ".s"
    open(path, "w").write(build(cfg, HEADER))
```
